```python
import torch

def _softmax(x, axis=-1):
    return torch.softmax(x, dim=axis)
def _gelu(x):
    return torch.nn.functional.gelu(x, approximate="tanh")
def _silu(x):
    return torch.nn.functional.silu(x)
def _sigmoid(x):
    return torch.sigmoid(x)
def _layernorm(x, axis=-1, eps=1e-5):
    m = x.mean(dim=axis, keepdim=True)
    v = x.var(dim=axis, keepdim=True, unbiased=False)
    return (x - m) / torch.sqrt(v + eps)
def _scatter_add(tgt, idx, src, axis=0):
    return tgt.clone().index_add_(axis, idx, src)
def _segment_sum(src, seg, n):
    out = torch.zeros((n,) + src.shape[1:], dtype=src.dtype)
    return out.index_add_(0, seg, src)
def _pad(x, pw):
    flat = tuple(v for pair in reversed(pw) for v in pair)
    return torch.nn.functional.pad(x, flat)

kernel_name = 'standalone__gqa_softmax__sampling'

def setup_inputs():

    _w = (lambda a: (lambda t: t.to(torch.bfloat16) if t.is_floating_point() else t)(torch.as_tensor(a)))
    B, Hq, Hkv, Sq, Sk, D = 16, 32, 8, 16, 2048, 128
    return {
        "q": _w((lambda *s: torch.randn(*s, dtype=torch.bfloat16) * 0.8)(B, Hq, Sq, D)),
        "k": _w((lambda *s: torch.randn(*s, dtype=torch.bfloat16) * 0.8)(B, Hkv, Sk, D)),
        "v": _w((lambda *s: torch.randn(*s, dtype=torch.bfloat16) * 0.05)(B, Hkv, Sk, D)),
    }

def reference(q, k, v):
    B, Hq, Sq, D = q.shape
    Hkv = k.shape[1]
    rep = Hq // Hkv
    k = (lambda x, n, axis: torch.repeat_interleave(x, n, dim=axis))(k, rep, axis=1)
    v = (lambda x, n, axis: torch.repeat_interleave(x, n, dim=axis))(v, rep, axis=1)
    scale = D ** -0.5
    scores = torch.einsum("bhqd,bhkd->bhqk", q, k) * scale
    p = _softmax(scores, axis=-1)
    return torch.einsum("bhqk,bhkd->bhqd", p, v)
```

```python
import re

REG = re.compile(r'^(-|abs\()?([vsa])(\d+|\[(\d+):(\d+)\])\)?$')

def regs_of(tok):
    tok = tok.strip()
    if tok in ('vcc',): return {('s', 106), ('s', 107)}
    if tok == 'exec': return {('s', 126), ('s', 127)}
    if tok == 'm0': return {('s', 124)}
    m = REG.match(tok)
    if not m: return set()
    k = m.group(2)
    if m.group(4) is not None:
        return {(k, i) for i in range(int(m.group(4)), int(m.group(5)) + 1)}
    return {(k, int(m.group(3)))}

TRANS = ('v_exp_f32', 'v_log_f32', 'v_rcp_f32', 'v_rsq_f32', 'v_sqrt_f32')

class Ins:
    def __init__(self, text):
        self.text = text
        t = text.split(';')[0].strip()
        self.op = t.split()[0]
        rest = t[len(self.op):].strip()
        ops = [o.strip() for o in rest.split(',')] if rest else []
        if ops:
            parts = ops[-1].split()
            ops[-1] = parts[0] if parts else ''
            self.mods = parts[1:]
        else:
            self.mods = []
        self.ops = ops
        op = self.op
        self.w = set(); self.r = set()
        self.kind = 'other'
        R = [regs_of(o) for o in ops]
        if op.startswith('v_mfma'):
            self.kind = 'mfma'; self.w = R[0]; self.ab = R[1] | R[2]; self.c = R[3]; self.r = self.ab | self.c
            self.passes = 8 if '32x32' in op else 4
        elif op.startswith('v_permlane'):
            self.kind = 'perml'; self.w = R[0] | R[1]; self.r = R[0] | R[1]
        elif op.startswith('v_cmp'):
            self.kind = 'valu'; self.w = R[0]; self.r = set().union(*R[1:])
        elif op in ('v_readfirstlane_b32', 'v_readlane_b32'):
            self.kind = 'rdlane'; self.w = R[0]; self.r = set().union(*R[1:])
        elif op.startswith('v_'):
            self.kind = 'trans' if op.replace('_e32','').replace('_e64','') in TRANS else 'valu'
            self.w = R[0]; self.r = set().union(*R[1:]) if len(R) > 1 else set()
            if op.startswith('v_fmac') or op.startswith('v_pk_fmac'): self.r |= R[0]
            if op.startswith('v_cndmask') and len(ops) == 3: self.r |= regs_of('vcc')
            if any(m.startswith('row_') or m.startswith('quad_perm') for m in self.mods): self.dpp = True
        elif op.startswith('ds_read') or op.startswith('ds_bpermute') or op.startswith('ds_swizzle'):
            self.kind = 'lds'; self.w = R[0]; self.r = set().union(*R[1:])
        elif op.startswith('ds_write'):
            self.kind = 'lds'; self.r = set().union(*R)
        elif op.startswith('buffer_load') or op.startswith('global_load'):
            self.kind = 'vmem'
            if 'lds' in self.mods:
                self.r = set().union(*R) | regs_of('m0'); self.dma = True
            else:
                self.w = R[0]; self.r = set().union(*R[1:])
        elif op.startswith('buffer_store') or op.startswith('buffer_atomic') or op.startswith('global_store'):
            self.kind = 'vmem'; self.r = set().union(*R); self.store = R[0]
            if 'sc0' in self.mods and op.startswith('buffer_atomic'): self.w = R[0]
        elif op.startswith('s_'):
            self.kind = 'salu'
            if op.startswith('s_cmp') or op.startswith('s_cbranch') or op in ('s_branch','s_waitcnt','s_barrier','s_nop','s_endpgm','s_setprio','s_sleep'):
                self.r = set().union(*R) if R else set()
            else:
                self.w = R[0]; self.r = set().union(*R[1:]) if len(R) > 1 else set()
        self.states = 1
        if op == 's_nop': self.states = int(ops[0]) + 1

def isv(k): return k in ('valu', 'trans', 'perml', 'rdlane')

def need(p, c):
    n = 0
    if isv(p.kind):
        vw = {x for x in p.w if x[0] in 'va'}
        sw = {x for x in p.w if x[0] == 's'}
        if c.kind == 'mfma' and vw & c.r: n = max(n, 2)
        if c.kind == 'perml' and vw & c.r: n = max(n, 2)
        if c.kind == 'rdlane' and vw & c.r: n = max(n, 1)
        if getattr(c, 'dpp', False) and vw & c.r: n = max(n, 2)
        if p.kind == 'trans' and c.kind in ('valu', 'perml', 'rdlane', 'mfma') and vw & c.r: n = max(n, 1)
        if sw:
            if c.kind == 'vmem' and sw & c.r: n = max(n, 5)
            if isv(c.kind) and sw & c.r: n = max(n, 4 if c.kind == 'rdlane' else 2)
    if p.kind == 'salu' and ('s', 124) in p.w and getattr(c, 'dma', False): n = max(n, 1)
    if p.kind == 'mfma':
        big = {4: 8, 8: 12}[p.passes]
        if c.kind == 'mfma':
            if p.w & c.ab: n = max(n, big)
            if p.w & c.c and not (p.w == c.c and p.passes == c.passes): n = max(n, big - 2)
            if p.w & c.w and not (p.w == c.c): n = max(n, big)
        elif (isv(c.kind) and (p.w & (c.r | c.w))) or (c.kind in ('vmem', 'lds') and (p.w & (c.r | c.w))):
            n = max(n, big)
        if isv(c.kind) and (p.c & c.w): n = max(n, {4: 3, 8: 7}[p.passes])
    if p.kind == 'vmem' and getattr(p, 'store', None) and ('x4' in p.op or 'x3' in p.op):
        if p.store & c.w: n = max(n, 2)
    return n

class Asm:
    def __init__(self):
        self.lines = []
    def __call__(self, s):
        for ln in s.split('\n'):
            self.lines.append(ln)
    def label(self, l): self.lines.append(l + ':')
    def text(self): return '\n'.join(self.lines) + '\n'

def parse(lines):
    out = []
    for ln in lines:
        t = ln.split(';')[0].strip()
        if not t or t.startswith('.'): continue
        if t.endswith(':'):
            out.append(('label', t[:-1])); continue
        out.append(('ins', Ins(t)))
    return out

def check_hazards(lines, maxwin=20):
    prog = parse(lines)
    labels = {x[1]: i for i, x in enumerate(prog) if x[0] == 'label'}
    errs = []
    def succ(i):
        k, x = prog[i]
        if k == 'ins':
            if x.op == 's_endpgm': return []
            if x.op == 's_branch': return [labels[x.ops[0]]]
            if x.op.startswith('s_cbranch'): return [labels[x.ops[0]], i + 1]
        return [i + 1] if i + 1 < len(prog) else []
    for i, (k, p) in enumerate(prog):
        if k != 'ins': continue
        if not (p.w or getattr(p, 'store', None) or p.kind == 'mfma'): continue
        stack = [(j, 0) for j in succ(i)]
        seen = set()
        while stack:
            j, d = stack.pop()
            if (j, d) in seen or d >= maxwin: continue
            seen.add((j, d))
            kk, c = prog[j]
            if kk == 'ins':
                n = need(p, c)
                if n > d: errs.append(f"hazard: '{p.text}' -> '{c.text}' needs {n} has {d}")
                d2 = d + c.states
            else:
                d2 = d
            for s in succ(j): stack.append((s, d2))
    return sorted(set(errs))

def autonop(lines, maxwin=16):
    out = []
    hist = []
    for ln in lines:
        t = ln.split(';')[0].strip()
        if not t or t.startswith('.') or t.endswith(':'):
            out.append(ln); continue
        c = Ins(t)
        d = 0; pad = 0
        for p in reversed(hist):
            if d >= maxwin: break
            n = need(p, c)
            if n > d: pad = max(pad, n - d)
            d += p.states
        while pad > 0:
            k = min(pad, 16)
            nop = f"  s_nop {k-1}"
            out.append(nop); hist.append(Ins(nop.strip())); pad -= k
        out.append(ln); hist.append(c)
        if c.op in ('s_branch', 's_endpgm'): hist = []
    return out
```

```python
import sys, struct, math
from asmlib import *

NAME = "standalone__gqa_softmax__sampling_kernel"
HEADER = open('standalone__gqa_softmax__sampling.s.ref').read().split('; Override')[0]

def f2u(x): return struct.unpack('<I', struct.pack('<f', x))[0]

def gen(nA=16, pol=" nt", prio=True):
    nB = 32 - nA
    a = Asm()
    a(HEADER.rstrip('\n'))
    a("; @launch grid=(256,1,1) block=(384,1,1) lds=131072")
    a('.amdgcn_target "amdgcn-amd-amdhsa--gfx950"')
    a(".text")
    a(f".globl {NAME}")
    a(".p2align 8")
    a(f".type {NAME},@function")
    a(f"{NAME}:")
    a("  s_cmp_ge_u32 s2, 256")
    a("  s_cbranch_scc1 L_end")
    a("  s_load_dwordx8 s[4:11], s[0:1], 0")
    a("  s_load_dwordx4 s[12:15], s[0:1], 32")
    a("  v_lshrrev_b32 v1, 6, v0")
    a("  v_and_b32 v0, 63, v0")
    a("  v_readfirstlane_b32 s3, v1")
    a("  s_and_b32 s32, s2, 127")
    a("  s_lshr_b32 s33, s2, 7")
    a("  s_cmp_eq_u32 s33, 0")
    a(f"  s_cselect_b32 s34, {nB}, {nA}")
    a(f"  s_cselect_b32 s35, {nA*16384}, 0")
    a("  v_and_b32 v2, 15, v0")
    a("  v_lshrrev_b32 v3, 4, v0")
    a("  s_cmp_ge_u32 s3, 2")
    a("  s_cbranch_scc1 L_compute")
    if prio: a("  s_setprio 3")
    a("  s_lshl_b32 s39, s32, 19")
    a("  s_add_u32 s39, s39, s35")
    a("  s_lshl_b32 s18, s34, 14")
    a("  s_mov_b32 s19, 0x00020000")
    a("  v_lshlrev_b32 v4, 8, v3")
    a("  s_mov_b32 s38, 0")
    a("  s_mov_b32 s37, 0")
    a("  s_mov_b32 s36, s34")
    a("  s_cmp_eq_u32 s3, 1")
    a("  s_cbranch_scc1 L_vload")
    def issue_tile(isK):
        base = 0 if isK else 65536
        for grp in range(4):
            a(f"  s_add_u32 m0, s37, {base + grp*4096}")
            a(f"  s_add_u32 s39, s38, {grp*4096}")
            for j in range(4):
                vo = 8 + (j if isK else (j & 1))
                a(f"  buffer_load_dwordx4 v{vo}, s[16:19], s39 offen offset:{j*1024}{pol} lds")
        a("  s_add_u32 s38, s38, 16384")
        a("  s_add_u32 s37, s37, 16384")
        a("  s_and_b32 s37, s37, 0xffff")
    for isK in (True, False):
        tag = 'k' if isK else 'v'
        if not isK: a.label("L_vload")
        if isK:
            for j in range(4):
                a(f"  v_add_u32 v5, {4*j}, v3")
                a("  v_xor_b32 v5, v5, v2")
                a(f"  v_lshl_add_u32 v{8+j}, v5, 4, v4")
        else:
            for j in range(2):
                a(f"  v_add_u32 v5, {4*j}, v3")
                a("  v_lshlrev_b32 v5, 1, v5")
                a("  v_xor_b32 v5, v5, v2")
                a(f"  v_lshl_add_u32 v{8+j}, v5, 4, v4")
        a("  s_waitcnt lgkmcnt(0)")
        lo, hi = (6, 7) if isK else (8, 9)
        a(f"  s_add_u32 s16, s{lo}, s39")
        a(f"  s_addc_u32 s17, s{hi}, 0")
        a("  s_and_b32 s17, s17, 0xffff")
        for t in range(3): issue_tile(isK)
        if not isK: a("  s_barrier")
        a.label(f"L_{tag}loop")
        a("  s_waitcnt vmcnt(32)")
        a("  s_barrier")
        issue_tile(isK)
        a("  s_sub_u32 s36, s36, 1")
        a("  s_cmp_lg_u32 s36, 0")
        a(f"  s_cbranch_scc1 L_{tag}loop")
        a("  s_endpgm")
    QF, KA, KC, VA, VC, O, S, P, FR, PB = 16, 32, 36, 40, 48, 56, 88, 104, 112, 176
    M, MC, L, AL, T0, T1, T2, T3 = 8, 9, 10, 12, 4, 5, 6, 7
    a.label("L_compute")
    a("  s_sub_u32 s3, s3, 2")
    a("  s_lshl_b32 s38, s32, 14")
    a("  s_lshl_b32 s39, s3, 12")
    a("  s_add_u32 s38, s38, s39")
    a("  v_lshlrev_b32 v4, 8, v2")
    a("  v_lshl_add_u32 v5, v3, 4, v4")
    a("  s_mov_b32 s18, 0x200000")
    a("  s_mov_b32 s19, 0x00020000")
    a("  s_waitcnt lgkmcnt(0)")
    a("  s_mov_b32 s16, s4")
    a("  s_and_b32 s17, s5, 0xffff")
    for ks in range(4):
        a(f"  buffer_load_dwordx4 v[{QF+4*ks}:{QF+4*ks+3}], v5, s[16:19], s38 offen offset:{ks*64}")
    a("  s_mov_b32 s20, s10")
    a("  s_and_b32 s21, s11, 0xffff")
    a("  s_mov_b32 s22, 0x200000")
    a("  s_mov_b32 s23, 0x00020000")
    a("  s_mov_b32 s24, s14")
    a("  s_and_b32 s25, s15, 0xffff")
    a("  s_mov_b32 s26, 0x10000000")
    a("  s_mov_b32 s27, 0x00020000")
    a("  s_mov_b32 s28, s12")
    a("  s_and_b32 s29, s13, 0xffff")
    a("  s_mov_b32 s30, 256")
    a("  s_mov_b32 s31, 0x00020000")
    a(f"  s_mov_b32 s40, {hex(f2u(128 ** -0.5 * math.log2(math.e)))}")
    for ks in range(4):
        a(f"  v_add_u32 v6, {4*ks}, v3")
        a("  v_xor_b32 v6, v6, v2")
        a(f"  v_lshl_add_u32 v{KA+ks}, v6, 4, v4")
    a("  v_lshrrev_b32 v6, 2, v0")
    a("  v_and_b32 v7, 3, v0")
    a("  v_lshlrev_b32 v7, 3, v7")
    a("  v_lshl_add_u32 v7, v6, 8, v7")
    a("  v_add_u32 v7, 0x10000, v7")
    a("  v_and_b32 v6, 7, v6")
    for dt in range(8):
        a(f"  v_xor_b32 v11, {dt}, v6")
        a(f"  v_lshl_add_u32 v{VA+dt}, v11, 5, v7")
    for i in range(32): a(f"  v_mov_b32 v{O+i}, 0")
    a(f"  v_mov_b32 v{M}, 0xff800000")
    a(f"  v_mov_b32 v{MC}, 0xff800000")
    a(f"  v_mov_b32 v{L}, 0")
    a(f"  v_mov_b32 v{AL}, 0")
    a(f"  v_mov_b32 v{AL+1}, 0")
    for ks in range(4): a(f"  v_mov_b32 v{KC+ks}, v{KA+ks}")
    a("  s_mov_b32 s41, 0")
    a("  s_mov_b32 s42, 0")
    a("  s_sub_u32 s36, s34, 1")
    a("  s_waitcnt vmcnt(0)")

    def fr(i): return f"v[{FR+4*i}:{FR+4*i+3}]"
    def softmax_ops():
        s = lambda i: f"v{S+i}"
        ops = []
        ops.append(f"v_max3_f32 v{T0}, {s(0)}, {s(1)}, {s(2)}")
        ops.append(f"v_max3_f32 v{T1}, {s(3)}, {s(4)}, {s(5)}")
        ops.append(f"v_max3_f32 v{T2}, {s(6)}, {s(7)}, {s(8)}")
        ops.append(f"v_max3_f32 v{T0}, v{T0}, v{T1}, v{M}")
        ops.append(f"v_max3_f32 v{T1}, {s(9)}, {s(10)}, {s(11)}")
        ops.append(f"v_max3_f32 v{T0}, v{T0}, v{T1}, v{T2}")
        ops.append(f"v_max3_f32 v{T1}, {s(12)}, {s(13)}, {s(14)}")
        ops.append(f"v_max3_f32 v{T0}, v{T0}, v{T1}, {s(15)}")
        ops.append(f"v_mov_b32 v{T1}, v{T0}")
        ops.append(f"v_permlane16_swap_b32 v{T0}, v{T1}")
        ops.append(f"v_max_f32 v{T0}, v{T0}, v{T1}")
        ops.append(f"v_mov_b32 v{T1}, v{T0}")
        ops.append(f"v_permlane32_swap_b32 v{T0}, v{T1}")
        ops.append(f"v_max_f32 v{M}, v{T0}, v{T1}")
        ops.append(f"v_mul_f32 v{T0}, s40, v{M}")
        ops.append(f"v_sub_f32 v{T1}, v{MC}, v{T0}")
        ops.append(f"v_mov_b32 v{MC}, v{T0}")
        ops.append(f"v_exp_f32 v{AL}, v{T1}")
        for i in range(16):
            ops.append(f"v_fma_f32 {s(i)}, {s(i)}, s40, -v{MC}")
            if i >= 1: ops.append(f"v_exp_f32 {s(i-1)}, {s(i-1)}")
        ops.append(f"v_mul_f32 v{L}, v{L}, v{AL}")
        ops.append(f"v_exp_f32 {s(15)}, {s(15)}")
        for i in range(0, 16, 2):
            ops.append(f"v_add_f32 v{T0}, {s(i)}, {s(i+1)}")
            ops.append(f"v_add_f32 v{L}, v{L}, v{T0}")
        cv = [f"v_cvt_pk_bf16_f32 v{P+i}, {s(2*i)}, {s(2*i+1)}" for i in range(8)]
        return ops, cv

    def iteration(doQK, doPV):
        lds = []
        if doQK:
            for kt in range(4):
                for ks in range(4):
                    lds.append(f"ds_read_b128 {fr(kt*4+ks)}, v{KC+ks} offset:{kt*4096}")
        nK = len(lds)
        if doPV:
            for kk in range(2):
                for dt in range(8):
                    j = kk*8 + dt
                    for hf in range(2):
                        lds.append(f"ds_read_b64_tr_b16 v[{FR+4*j+2*hf}:{FR+4*j+2*hf+1}], v{VC+dt} offset:{kk*8192+hf*4096}")
        st = dict(issued=0, done=0, qk=0)
        def issue(maxn):
            n = 0
            while st['issued'] < len(lds) and n < maxn and st['issued'] - st['done'] < 15:
                i = st['issued']
                if i >= nK and doQK and (i - nK) // 2 >= st['qk']: break
                a("  " + lds[i]); st['issued'] += 1; n += 1
        def wait(idx):
            if idx >= st['done']:
                assert idx < st['issued']
                a(f"  s_waitcnt lgkmcnt({st['issued'] - idx - 1})")
                st['done'] = idx + 1
        issue(14)
        if doPV:
            for i in range(16):
                a(f"  v_pk_mul_f32 v[{O+2*i}:{O+2*i+1}], v[{O+2*i}:{O+2*i+1}], v[{AL}:{AL+1}] op_sel_hi:[1,0]")
        if doQK:
            for kt in range(4):
                for ks in range(4):
                    i = kt*4 + ks
                    wait(i)
                    c = "0" if ks == 0 else f"v[{S+4*kt}:{S+4*kt+3}]"
                    a(f"  v_mfma_f32_16x16x32_bf16 v[{S+4*kt}:{S+4*kt+3}], {fr(i)}, v[{QF+4*ks}:{QF+4*ks+3}], {c}")
                    st['qk'] += 1
                    issue(2)
            ops, cv = softmax_ops()
        else:
            ops, cv = [], []
        if doPV:
            per = (len(ops) + 15) // 16
            for kk in range(2):
                for dt in range(8):
                    j = kk*8 + dt
                    wait(nK + 2*j + 1)
                    a(f"  v_mfma_f32_16x16x32_bf16 v[{O+4*dt}:{O+4*dt+3}], {fr(j)}, v[{P+4*kk}:{P+4*kk+3}], v[{O+4*dt}:{O+4*dt+3}]")
                    issue(3)
                    for o in ops[:per]: a("  " + o)
                    ops = ops[per:]
        for o in ops: a("  " + o)
        for o in cv: a("  " + o)
        assert st['issued'] == len(lds) and st['done'] == len(lds)
    def advance(k, v):
        if k:
            a("  s_add_u32 s41, s41, 16384")
            a("  s_and_b32 s41, s41, 0xffff")
            for ks in range(4): a(f"  v_add_u32 v{KC+ks}, s41, v{KA+ks}")
        if v:
            for dt in range(8): a(f"  v_add_u32 v{VC+dt}, s42, v{VA+dt}")
            a("  s_add_u32 s42, s42, 16384")
            a("  s_and_b32 s42, s42, 0xffff")
    a("  s_barrier")
    iteration(True, False)
    advance(True, True)
    a.label("L_cloop")
    a("  s_barrier")
    iteration(True, True)
    advance(True, True)
    a("  s_sub_u32 s36, s36, 1")
    a("  s_cmp_lg_u32 s36, 0")
    a("  s_cbranch_scc1 L_cloop")
    a("  s_barrier")
    iteration(False, True)
    a("  s_lshl_b32 s43, s38, 2")
    a("  s_add_u32 s44, s43, 4096")
    a("  s_add_u32 s45, s43, 8192")
    a("  v_lshlrev_b32 v4, 4, v0")
    a("  v_lshlrev_b32 v5, 3, v0")
    a("  s_lshr_b32 s46, s32, 1")
    a("  s_lshl_b32 s46, s46, 2")
    a("  s_and_b32 s47, s32, 1")
    a("  s_lshl_b32 s47, s47, 4")
    a("  v_mov_b32 v6, s46")
    a("  s_cmp_eq_u32 s33, 1")
    a("  s_cbranch_scc1 L_consume")
    a(f"  v_mov_b32 v{MC+2}, v{L}")
    a(f"  v_mov_b32 v14, v{MC}")
    a(f"  v_mov_b32 v15, v{L}")
    for j in range(8):
        so = "s43" if j < 4 else "s44"
        a(f"  buffer_store_dwordx4 v[{O+4*j}:{O+4*j+3}], v4, s[24:27], {so} offen offset:{(j&3)*1024} sc1")
    a("  buffer_store_dwordx2 v[14:15], v5, s[24:27], s45 offen sc1")
    a("  s_waitcnt vmcnt(0)")
    a("  s_barrier")
    a("  s_cmp_lg_u32 s3, 0")
    a("  s_cbranch_scc1 L_end")
    a("  s_lshl_b32 s48, 1, s47")
    a("  v_mov_b32 v7, s48")
    a("  s_mov_b64 exec, 1")
    a("  buffer_atomic_add v7, v6, s[28:31], 0 offen")
    a("  s_endpgm")
    a.label("L_consume")
    a.label("L_poll")
    a("  buffer_load_dword v7, v6, s[28:31], 0 offen sc1")
    a("  s_waitcnt vmcnt(0)")
    a("  v_readfirstlane_b32 s48, v7")
    a("  s_lshr_b32 s48, s48, s47")
    a("  s_and_b32 s48, s48, 0xffff")
    a("  s_cmp_lg_u32 s48, 0")
    a("  s_cbranch_scc1 L_got")
    a("  s_sleep 2")
    a("  s_branch L_poll")
    a.label("L_got")
    a(f"  buffer_load_dwordx2 v[{PB+32}:{PB+33}], v5, s[24:27], s45 offen sc1")
    for j in range(8):
        so = "s43" if j < 4 else "s44"
        a(f"  buffer_load_dwordx4 v[{PB+4*j}:{PB+4*j+3}], v4, s[24:27], {so} offen offset:{(j&3)*1024} sc1")
    a("  v_lshlrev_b32 v11, 8, v2")
    a("  v_and_b32 v14, 1, v3")
    a("  v_lshl_add_u32 v11, v14, 5, v11")
    a("  v_lshrrev_b32 v14, 1, v3")
    a("  v_lshl_add_u32 v11, v14, 4, v11")
    a("  s_waitcnt vmcnt(8)")
    a(f"  v_max_f32 v{T0}, v{MC}, v{PB+32}")
    a(f"  v_sub_f32 v{T1}, v{MC}, v{T0}")
    a(f"  v_sub_f32 v{T2}, v{PB+32}, v{T0}")
    a(f"  v_exp_f32 v{T1}, v{T1}")
    a(f"  v_exp_f32 v{T2}, v{T2}")
    a(f"  v_mul_f32 v{L}, v{L}, v{T1}")
    a(f"  v_fma_f32 v{L}, v{PB+33}, v{T2}, v{L}")
    a(f"  v_mov_b32 v{T0}, v{L}")
    a(f"  v_permlane16_swap_b32 v{L}, v{T0}")
    a(f"  v_add_f32 v{L}, v{L}, v{T0}")
    a(f"  v_mov_b32 v{T0}, v{L}")
    a(f"  v_permlane32_swap_b32 v{L}, v{T0}")
    a(f"  v_add_f32 v{L}, v{L}, v{T0}")
    a(f"  v_rcp_f32 v{L}, v{L}")
    a(f"  v_mul_f32 v{T1}, v{T1}, v{L}")
    a(f"  v_mul_f32 v{T2}, v{T2}, v{L}")
    for i in range(32): a(f"  v_mul_f32 v{O+i}, v{O+i}, v{T1}")
    for t in range(4):
        a(f"  s_waitcnt vmcnt({6-2*t + t})")
        for i in range(8*t, 8*t+8): a(f"  v_fma_f32 v{O+i}, v{PB+i}, v{T2}, v{O+i}")
        r = FR + 4*t
        for i in range(4): a(f"  v_cvt_pk_bf16_f32 v{r+i}, v{O+8*t+2*i}, v{O+8*t+2*i+1}")
        a(f"  v_permlane16_swap_b32 v{r}, v{r+2}")
        a(f"  v_permlane16_swap_b32 v{r+1}, v{r+3}")
        a(f"  buffer_store_dwordx4 v[{r}:{r+3}], v11, s[20:23], s38 offen offset:{t*64}")
    a.label("L_end")
    a("  s_endpgm")
    a('.section .rodata,"a"')
    a(".p2align 6")
    a(f".amdhsa_kernel {NAME}")
    a("  .amdhsa_next_free_vgpr 212")
    a("  .amdhsa_next_free_sgpr 56")
    a("  .amdhsa_accum_offset 212")
    a("  .amdhsa_group_segment_fixed_size 0")
    a("  .amdhsa_kernarg_size 48")
    a("  .amdhsa_user_sgpr_count 2")
    a("  .amdhsa_user_sgpr_kernarg_segment_ptr 1")
    a("  .amdhsa_system_sgpr_workgroup_id_x 1")
    a(".end_amdhsa_kernel")
    lines = autonop(a.lines)
    errs = check_hazards(lines)
    assert not errs, "\n".join(errs)
    return "\n".join(lines) + "\n"

if __name__ == "__main__":
    import argparse
    ap = argparse.ArgumentParser()
    ap.add_argument("--nA", type=int, default=16)
    ap.add_argument("--pol", default="nt")
    ap.add_argument("-o", default="standalone__gqa_softmax__sampling.s")
    args = ap.parse_args()
    pol = (" " + args.pol.replace(",", " ")) if args.pol else ""
    open(args.o, "w").write(gen(args.nA, pol))
```

```python
import sys, struct, math
from asmlib import *

NAME = "standalone__gqa_softmax__sampling_kernel"
HEADER = open('standalone__gqa_softmax__sampling.s.ref').read().split('; Override')[0]
def f2u(x): return struct.unpack('<I', struct.pack('<f', x))[0]

NT = 32
KRING, VRING, MBUF = 0, 65536, 98304
LDS = MBUF + 4 * 4608

def gen(pol=" nt", WK=20, WV=10, stamps=False, codepf=True, wmap=9, nexp1=0, prio=True, warm=True):
    a = Asm()
    def stamp(i):
        if stamps:
            a(f"  s_memrealtime s[{60+2*i}:{61+2*i}]")
            a("  s_waitcnt lgkmcnt(0)")
    def ws_srd():
        a("  s_mov_b32 s24, s14"); a("  s_and_b32 s25, s15, 0xffff"); a("  s_mov_b32 s26, 0x10000000"); a("  s_mov_b32 s27, 0x00020000")
    def dump_stamps(n, slot):
        ws_srd()
        a("  s_lshl_b32 s58, s2, 8")
        a(f"  s_add_u32 s58, s58, {(16<<20) + slot*64}")
        a("  v_mov_b32 v1, 0")
        for i in range(n):
            a(f"  v_mov_b32 v2, s{60+2*i}")
            a(f"  buffer_store_dword v2, v1, s[24:27], s58 offen offset:{4*i}")
    a(HEADER.rstrip('\n'))
    a(f"; @launch grid=(256,1,1) block=(640,1,1) lds={LDS}")
    a('.amdgcn_target "amdgcn-amd-amdhsa--gfx950"')
    a(".text")
    a(f".globl {NAME}")
    a(".p2align 8")
    a(f".type {NAME},@function")
    a(f"{NAME}:")
    a("  s_cmp_ge_u32 s2, 256")
    a("  s_cbranch_scc1 L_end")
    stamp(0)
    a("  s_load_dwordx8 s[4:11], s[0:1], 0")
    if stamps: a("  s_load_dwordx4 s[12:15], s[0:1], 32")
    a("  v_lshrrev_b32 v1, 6, v0")
    a("  v_and_b32 v0, 63, v0")
    a("  v_readfirstlane_b32 s3, v1")
    a("  s_and_b32 s32, s2, 7")
    a("  s_lshl_b32 s32, s32, 4")
    if wmap == 9:
        a("  s_bfe_u32 s33, s2, 0x40003")
        a("  s_add_u32 s32, s32, s33")
        a("  s_lshr_b32 s33, s2, 7")
    else:
        a("  s_lshr_b32 s33, s2, 4")
        a("  s_add_u32 s32, s32, s33")
        a("  s_bfe_u32 s33, s2, 0x10003")
    a("  s_lshl_b32 s33, s33, 7")
    a("  v_and_b32 v2, 15, v0")
    a("  v_lshrrev_b32 v3, 4, v0")
    a("  s_mov_b32 s19, 0x00020000")
    a("  s_cmp_ge_u32 s3, 2")
    a("  s_cbranch_scc1 L_compute")
    if prio: a("  s_setprio 3")
    a("  s_lshl_b32 s39, s32, 19")
    a("  s_mov_b32 s18, 0x80000")
    a("  s_mov_b32 s38, 0")
    a("  s_mov_b32 s37, 0")
    if stamps: a("  s_mov_b32 s43, 4")
    a("  s_cmp_eq_u32 s3, 1")
    a("  s_cbranch_scc1 L_vload")
    assert WK % 4 == 0 and WK <= 32 and WV % 2 == 0 and WV <= 16
    for isK in (True, False):
        t = 'k' if isK else 'v'
        if isK:
            a("  v_lshlrev_b32 v4, 8, v3")
            for j in range(4):
                a(f"  v_add_u32 v5, {4*j}, v3")
                a("  v_xor_b32 v5, v5, v2")
                a(f"  v_lshl_add_u32 v{8+j}, v5, 4, v4")
            a(f"  s_mov_b32 s40, {4 + WK//4}")
            a(f"  s_mov_b32 s36, {NT}")
        else:
            a.label("L_vload")
            a("  v_lshrrev_b32 v4, 3, v0")
            a("  v_lshlrev_b32 v4, 8, v4")
            a("  v_and_b32 v5, 7, v0")
            a("  v_lshlrev_b32 v6, 1, v3")
            a("  v_xor_b32 v5, v5, v6")
            a("  v_lshl_add_u32 v8, v5, 4, v4")
            a("  v_add_u32 v8, s33, v8")
            a("  v_add_u32 v9, 1024, v8")
            a(f"  s_mov_b32 s40, {WV//2}")
            a(f"  s_mov_b32 s36, {NT+1}")
        a("  s_waitcnt lgkmcnt(0)")
        lo = 6 if isK else 8
        a(f"  s_add_u32 s16, s{lo}, s39")
        a(f"  s_addc_u32 s17, s{lo+1}, 0")
        a("  s_and_b32 s17, s17, 0xffff")
        stamp(1)
        a.label(f"L_{t}loop")
        a(f"  s_waitcnt vmcnt({WK if isK else WV})")
        a("  s_sub_u32 s40, s40, 1")
        a(f"  s_cbranch_scc0 L_{t}issue")
        if stamps:
            stamp(2)
            a("  s_mov_b32 m0, s43"); a("  s_nop 3"); a("  v_writelane_b32 v20, s64, m0")
        a("  s_barrier")
        if stamps:
            stamp(2)
            a("  v_writelane_b32 v21, s64, m0")
            a("  s_add_u32 s43, s43, 1")
        a("  s_mov_b32 s40, 3")
        a("  s_sub_u32 s36, s36, 1")
        a("  s_cmp_eq_u32 s36, 0")
        a("  s_cbranch_scc1 L_lend")
        a.label(f"L_{t}issue")
        if isK:
            a("  s_mov_b32 m0, s37")
            a("  s_add_u32 s37, s37, 4096")
            for j in range(4):
                a(f"  buffer_load_dwordx4 v{8+j}, s[16:19], s38 offen offset:{j*1024}{pol} lds")
            a("  s_and_b32 s37, s37, 0xffff")
        else:
            a(f"  s_add_u32 m0, s37, {VRING}")
            a("  s_add_u32 s37, s37, 2048")
            for j in range(2):
                a(f"  buffer_load_dwordx4 v{8+j}, s[16:19], s38 offen offset:{j*1024}{pol} lds")
            a("  s_and_b32 s37, s37, 0x7fff")
        a("  s_add_u32 s38, s38, 4096")
        a(f"  s_branch L_{t}loop")
    a.label("L_lend")
    if stamps:
        ws_srd()
        a("  v_writelane_b32 v20, s60, 0")
        a("  v_writelane_b32 v20, s62, 1")
        a("  s_lshl_b32 s58, s2, 10")
        a("  s_lshl_b32 s59, s3, 9")
        a("  s_add_u32 s58, s58, s59")
        a(f"  s_add_u32 s58, s58, {17<<20}")
        a("  v_lshlrev_b32 v1, 2, v0")
        a("  buffer_store_dword v20, v1, s[24:27], s58 offen")
        a("  buffer_store_dword v21, v1, s[24:27], s58 offen offset:256")
    a("  s_endpgm")
    T0, T1, T2, T3, M, MC, L, VOUT, AL = 4, 5, 6, 7, 8, 9, 10, 11, 12
    VMB, VMS = 14, 15
    QF, KC, VC, O, S, P, FR, PO = 16, 32, 36, 40, 56, 72, 80, 144
    NV = 164
    a.label("L_compute")
    a("  s_sub_u32 s3, s3, 2")
    a("  s_and_b32 s34, s3, 3")
    a("  s_lshr_b32 s35, s3, 2")
    if codepf:
        a("  s_getpc_b64 s[52:53]")
        a.label("L_pc")
        a(f"  s_sub_u32 s52, s52, L_pc-{NAME}")
        a("  s_subb_u32 s53, s53, 0")
        a(f"  s_mov_b32 s54, L_codeend-{NAME}")
        a("  s_mov_b32 s55, 0x00020000")
        a("  s_lshl_b32 s39, s3, 10")
        a("  v_lshlrev_b32 v4, 4, v0")
        a(f"  buffer_load_dwordx4 v[{FR}:{FR+3}], v4, s[52:55], s39 offen")
    a("  s_lshl_b32 s38, s32, 14")
    a("  s_lshl_b32 s39, s34, 12")
    a("  s_add_u32 s38, s38, s39")
    a("  v_lshlrev_b32 v4, 8, v2")
    a("  v_lshl_add_u32 v5, v3, 4, v4")
    a("  s_mov_b32 s18, 0x200000")
    a("  s_waitcnt lgkmcnt(0)")
    a("  s_mov_b32 s16, s4")
    a("  s_and_b32 s17, s5, 0xffff")
    for ks in range(4):
        a(f"  buffer_load_dwordx4 v[{QF+4*ks}:{QF+4*ks+3}], v5, s[16:19], s38 offen offset:{ks*64}")
    a("  s_mov_b32 s20, s10")
    a("  s_and_b32 s21, s11, 0xffff")
    a("  s_mov_b32 s22, 0x200000")
    a("  s_mov_b32 s23, 0x00020000")
    a("  s_add_u32 s41, s38, s33")
    a(f"  s_mov_b32 s40, {hex(f2u(128 ** -0.5 * math.log2(math.e)))}")
    a(f"  v_and_b32 v6, 1, v3")
    a(f"  v_lshl_add_u32 v{VOUT}, v6, 5, v4")
    a(f"  v_lshrrev_b32 v6, 1, v3")
    a(f"  v_lshl_add_u32 v{VOUT}, v6, 4, v{VOUT}")
    if warm:
        a(f"  buffer_load_dword v{PO}, v{VOUT}, s[20:23], s41 offen")
    a("  s_lshl_b32 s39, s35, 14")
    a("  v_add_u32 v4, s39, v4")
    for ks in range(4):
        a(f"  v_add_u32 v6, {4*ks}, v3")
        a("  v_xor_b32 v6, v6, v2")
        a(f"  v_lshl_add_u32 v{KC+ks}, v6, 4, v4")
    a("  v_lshrrev_b32 v6, 2, v0")
    a("  v_and_b32 v7, 3, v0")
    a("  v_lshlrev_b32 v7, 3, v7")
    a("  v_lshl_add_u32 v7, v6, 7, v7")
    a("  s_lshl_b32 s39, s35, 13")
    a(f"  s_add_u32 s39, s39, {VRING}")
    a("  v_add_u32 v7, s39, v7")
    a("  v_bfe_u32 v6, v0, 3, 2")
    for dt in range(4):
        a(f"  v_xor_b32 v5, {dt}, v6")
        a(f"  v_lshl_add_u32 v{VC+dt}, v5, 5, v7")
    a("  s_mul_i32 s39, s34, 4608")
    a(f"  s_add_u32 s39, s39, {MBUF}")
    a(f"  v_lshl_add_u32 v{VMB}, v0, 4, s39")
    a(f"  v_lshl_add_u32 v{VMS}, v0, 3, s39")
    for i in range(16): a(f"  v_mov_b32 v{O+i}, 0")
    a(f"  v_mov_b32 v{M}, 0xff800000")
    a(f"  v_mov_b32 v{MC}, 0xff800000")
    a(f"  v_mov_b32 v{L}, 0")
    a(f"  v_mov_b32 v{AL+1}, 0")
    a(f"  s_mov_b32 s36, {NT//2 - 1}")
    a(f"  s_waitcnt vmcnt({1 if warm else 0})")
    stamp(1)
    a("  s_cmp_eq_u32 s35, 0")
    a("  s_cbranch_scc1 L_cloop")
    a("  s_barrier")

    def fr(i): return f"v[{FR+4*i}:{FR+4*i+3}]"
    s = lambda i: f"v{S+i}"
    def half1(nexp):
        for i in range(15): a(f"  ds_read_b128 {fr(i)}, v{KC+(i&3)} offset:{(i>>2)*4096}")
        mx = {4: [f"v_max3_f32 v{T0}, {s(0)}, {s(1)}, {s(2)}"],
              }
        for i in range(16):
            kt, ks = i >> 2, i & 3
            a(f"  s_waitcnt lgkmcnt({14 if i == 0 else 15 - i})")
            c = "0" if ks == 0 else f"v[{S+4*kt}:{S+4*kt+3}]"
            a(f"  v_mfma_f32_16x16x32_bf16 v[{S+4*kt}:{S+4*kt+3}], {fr(i)}, v[{QF+4*ks}:{QF+4*ks+3}], {c}")
            if i == 0: a(f"  ds_read_b128 {fr(15)}, v{KC+3} offset:{3*4096}")
            if i == 9:  a(f"  v_max3_f32 v{T0}, {s(0)}, {s(1)}, {s(2)}")
            if i == 10: a(f"  v_max3_f32 v{T0}, v{T0}, {s(3)}, v{M}")
            if i == 13: a(f"  v_max3_f32 v{T1}, {s(4)}, {s(5)}, {s(6)}")
            if i == 14: a(f"  v_max3_f32 v{T0}, v{T0}, v{T1}, {s(7)}")
        for ks in range(4): a(f"  v_xor_b32 v{KC+ks}, 0x8000, v{KC+ks}")
        a(f"  v_max3_f32 v{T1}, {s(8)}, {s(9)}, {s(10)}")
        a(f"  v_max3_f32 v{T0}, v{T0}, v{T1}, {s(11)}")
        a(f"  v_max3_f32 v{T1}, {s(12)}, {s(13)}, {s(14)}")
        a(f"  v_max3_f32 v{T0}, v{T0}, v{T1}, {s(15)}")
        a(f"  v_mov_b32 v{T1}, v{T0}")
        a(f"  v_permlane16_swap_b32 v{T0}, v{T1}")
        a(f"  v_max_f32 v{T0}, v{T0}, v{T1}")
        a(f"  v_mov_b32 v{T1}, v{T0}")
        a(f"  v_permlane32_swap_b32 v{T0}, v{T1}")
        a(f"  v_max_f32 v{M}, v{T0}, v{T1}")
        a(f"  v_mul_f32 v{T0}, s40, v{M}")
        a(f"  v_sub_f32 v{T1}, v{MC}, v{T0}")
        a(f"  v_mov_b32 v{MC}, v{T0}")
        a(f"  v_exp_f32 v{AL}, v{T1}")
        for i in range(16): a(f"  v_fma_f32 {s(i)}, {s(i)}, s40, -v{MC}")
        for i in range(8):
            a(f"  v_pk_mul_f32 v[{O+2*i}:{O+2*i+1}], v[{O+2*i}:{O+2*i+1}], v[{AL}:{AL+1}] op_sel_hi:[1,0]")
        a(f"  v_mul_f32 v{L}, v{L}, v{AL}")
        expo(0, nexp)
    def expo(lo, hi):
        for i in range(lo, hi): a(f"  v_exp_f32 {s(i)}, {s(i)}")
        for i in range(lo, hi, 2):
            a(f"  v_add_f32 v{T0}, {s(i)}, {s(i+1)}")
            a(f"  v_cvt_pk_bf16_f32 v{P+i//2}, {s(i)}, {s(i+1)}")
            a(f"  v_add_f32 v{L}, v{L}, v{T0}")
    def vread(j, hf):
        kk, dt = j >> 2, j & 3
        a(f"  ds_read_b64_tr_b16 v[{FR+4*j+2*hf}:{FR+4*j+2*hf+1}], v{VC+dt} offset:{kk*4096+hf*2048}")
    def pv(j):
        kk, dt = j >> 2, j & 3
        a(f"  v_mfma_f32_16x16x32_bf16 v[{O+4*dt}:{O+4*dt+3}], {fr(j)}, v[{P+4*kk}:{P+4*kk+3}], v[{O+4*dt}:{O+4*dt+3}]")
    def half2(nexp):
        for i in range(14): vread(i >> 1, i & 1)
        expo(nexp, max(nexp, 8))
        a("  s_waitcnt lgkmcnt(12)")
        pv(0)
        vread(7, 0); vread(7, 1)
        for j in range(1, 4):
            a(f"  s_waitcnt lgkmcnt({14 - 2*j})")
            pv(j)
        expo(max(nexp, 8), 16)
        for j in range(4, 8):
            a(f"  s_waitcnt lgkmcnt({14 - 2*j})")
            pv(j)
        for dt in range(4): a(f"  v_xor_b32 v{VC+dt}, 0x4000, v{VC+dt}")
    a.label("L_cloop")
    a("  s_barrier")
    half1(nexp1)
    a("  s_barrier")
    half2(nexp1)
    a("  s_sub_u32 s36, s36, 1")
    a("  s_cmp_lg_u32 s36, 0")
    a("  s_cbranch_scc1 L_cloop")
    a("  s_barrier")
    stamp(2)
    half1(16)
    stamp(3)
    a("  s_barrier")
    stamp(4)
    a("  s_cmp_eq_u32 s35, 1")
    a("  s_cbranch_scc1 L_final")
    half2(16)
    a(f"  v_mov_b32 v{T0}, v{MC}")
    a(f"  v_mov_b32 v{T1}, v{L}")
    a(f"  ds_write_b64 v{VMS}, v[{T0}:{T1}] offset:4096")
    for j in range(4): a(f"  ds_write_b128 v{VMB}, v[{O+4*j}:{O+4*j+3}] offset:{j*1024}")
    a("  s_waitcnt lgkmcnt(0)")
    a("  s_barrier")
    a("  s_endpgm")
    a.label("L_final")
    a(f"  ds_read_b64 v[{PO+16}:{PO+17}], v{VMS} offset:4096")
    for i in range(14): vread(i >> 1, i & 1)
    a("  s_waitcnt lgkmcnt(12)")
    pv(0)
    vread(7, 0); vread(7, 1)
    fac = [f"v_max_f32 v{T0}, v{MC}, v{PO+16}",
           f"v_sub_f32 v{T1}, v{MC}, v{T0}",
           f"v_sub_f32 v{T2}, v{PO+16}, v{T0}",
           f"v_exp_f32 v{T1}, v{T1}",
           f"v_exp_f32 v{T2}, v{T2}",
           f"v_mul_f32 v{L}, v{L}, v{T1}",
           f"v_fma_f32 v{L}, v{PO+17}, v{T2}, v{L}",
           f"v_mov_b32 v{T0}, v{L}",
           f"v_permlane16_swap_b32 v{L}, v{T0}",
           f"v_add_f32 v{L}, v{L}, v{T0}",
           f"v_mov_b32 v{T0}, v{L}",
           f"v_permlane32_swap_b32 v{L}, v{T0}",
           f"v_add_f32 v{L}, v{L}, v{T0}",
           f"v_rcp_f32 v{L}, v{L}",
           f"v_mul_f32 v{T1}, v{T1}, v{L}",
           f"v_mul_f32 v{T2}, v{T2}, v{L}"]
    extra = 0
    for j in range(1, 8):
        a(f"  s_waitcnt lgkmcnt({14 - 2*j + extra})")
        pv(j)
        if j <= 4:
            a(f"  ds_read_b128 v[{PO+4*(j-1)}:{PO+4*(j-1)+3}], v{VMB} offset:{(j-1)*1024}"); extra += 1
        for o in fac[:3]: a("  " + o)
        fac = fac[3:]
    a("  s_waitcnt lgkmcnt(0)")
    for i in range(16): a(f"  v_mul_f32 v{PO+i}, v{PO+i}, v{T2}")
    for t in range(2):
        for i in range(8*t, 8*t+8): a(f"  v_fma_f32 v{O+i}, v{O+i}, v{T1}, v{PO+i}")
        r = FR + 4*t
        for i in range(4): a(f"  v_cvt_pk_bf16_f32 v{r+i}, v{O+8*t+2*i}, v{O+8*t+2*i+1}")
        a(f"  v_permlane16_swap_b32 v{r}, v{r+2}")
        a(f"  v_permlane16_swap_b32 v{r+1}, v{r+3}")
        a(f"  buffer_store_dwordx4 v[{r}:{r+3}], v{VOUT}, s[20:23], s41 offen offset:{t*64}")
    if stamps:
        stamp(5)
        a("  s_waitcnt vmcnt(0)")
        stamp(6)
        a("  s_cmp_lg_u32 s34, 0")
        a("  s_cbranch_scc1 L_end")
        dump_stamps(7, 2)
    a.label("L_end")
    a("  s_endpgm")
    a.label("L_codeend")
    a('.section .rodata,"a"')
    a(".p2align 6")
    a(f".amdhsa_kernel {NAME}")
    a(f"  .amdhsa_next_free_vgpr {NV}")
    a("  .amdhsa_next_free_sgpr 80")
    a(f"  .amdhsa_accum_offset {NV}")
    a("  .amdhsa_group_segment_fixed_size 0")
    a("  .amdhsa_kernarg_size 48")
    a("  .amdhsa_user_sgpr_count 2")
    a("  .amdhsa_user_sgpr_kernarg_segment_ptr 1")
    a("  .amdhsa_system_sgpr_workgroup_id_x 1")
    a(".end_amdhsa_kernel")
    lines = autonop(a.lines)
    errs = check_hazards(lines)
    assert not errs, "\n".join(errs)
    return "\n".join(lines) + "\n"

if __name__ == "__main__":
    import argparse
    ap = argparse.ArgumentParser()
    ap.add_argument("--pol", default="nt")
    ap.add_argument("--stamps", action="store_true")
    ap.add_argument("--WK", type=int, default=20)
    ap.add_argument("--WV", type=int, default=10)
    ap.add_argument("--wmap", type=int, default=9)
    ap.add_argument("--nexp1", type=int, default=0)
    ap.add_argument("--nocodepf", action="store_true")
    ap.add_argument("-o", default="standalone__gqa_softmax__sampling.s")
    args = ap.parse_args()
    pol = (" " + args.pol.replace(",", " ")) if args.pol else ""
    open(args.o, "w").write(gen(pol, args.WK, args.WV, args.stamps, not args.nocodepf, args.wmap, args.nexp1))
```
